```python
import torch

def _softmax(x, axis=-1):
    return torch.softmax(x, dim=axis)
def _gelu(x):
    return torch.nn.functional.gelu(x, approximate="tanh")
def _silu(x):
    return torch.nn.functional.silu(x)
def _sigmoid(x):
    return torch.sigmoid(x)
def _layernorm(x, axis=-1, eps=1e-5):
    m = x.mean(dim=axis, keepdim=True)
    v = x.var(dim=axis, keepdim=True, unbiased=False)
    return (x - m) / torch.sqrt(v + eps)
def _scatter_add(tgt, idx, src, axis=0):
    return tgt.clone().index_add_(axis, idx, src)
def _segment_sum(src, seg, n):
    out = torch.zeros((n,) + src.shape[1:], dtype=src.dtype)
    return out.index_add_(0, seg, src)
def _pad(x, pw):
    flat = tuple(v for pair in reversed(pw) for v in pair)
    return torch.nn.functional.pad(x, flat)

kernel_name = 'gated_mix__mha_block_cached__glu_gated_swiglu__decode'

def setup_inputs():

    _w = (lambda a: (lambda t: t.to(torch.bfloat16) if t.is_floating_point() else t)(torch.as_tensor(a)))
    def _A_setup():
        B, Sq, D = 4, 1, 512
        H, Sk, Dh = 32, 8192, 128
        return {
            "x": _w((lambda *s: torch.randn(*s, dtype=torch.bfloat16) * 0.05)(B, Sq, D)),
            "k_cache": _w((lambda *s: torch.randn(*s, dtype=torch.bfloat16) * 6.4)(B, H, Sk, Dh)),
            "v_cache": _w((lambda *s: torch.randn(*s, dtype=torch.bfloat16) * 0.2)(B, H, Sk, Dh)),
            "wq": _w((lambda *s: torch.randn(*s, dtype=torch.bfloat16) * 6.4)(D, H * Dh) * (D ** -0.5)),
            "wo": _w((lambda *s: torch.randn(*s, dtype=torch.bfloat16) * 0.2)(H * Dh, D) * ((H * Dh) ** -0.5)),
        }
    _A_in = _A_setup()

    def _B_setup():
        B, S, D, F = 4, 1, 512, 1792
        return {
            "x": _w((lambda *s: torch.randn(*s, dtype=torch.bfloat16) * 0.05)(B, S, D)),
            "w1": _w((lambda *s: torch.randn(*s, dtype=torch.bfloat16) * 0.8)(D, F) * (2.0 / D) ** 0.5),
            "w3": _w((lambda *s: torch.randn(*s, dtype=torch.bfloat16) * 0.8)(D, F) * (2.0 / D) ** 0.5),
            "w2": _w((lambda *s: torch.randn(*s, dtype=torch.bfloat16) * 0.8)(F, D) * (2.0 / F) ** 0.5),
        }
    _B_in = _B_setup()

    return {
        "A_x": _A_in["x"],
        "A_k_cache": _A_in["k_cache"],
        "A_v_cache": _A_in["v_cache"],
        "A_wq": _A_in["wq"],
        "A_wo": _A_in["wo"],
        "B_x": _B_in["x"],
        "B_w1": _B_in["w1"],
        "B_w3": _B_in["w3"],
        "B_w2": _B_in["w2"],
        "gate_w": _w((lambda *s: torch.randn(*s, dtype=torch.bfloat16) * 0.05)(512) * 16.0),
    }

def reference(A_x, A_k_cache, A_v_cache, A_wq, A_wo, B_x, B_w1, B_w3, B_w2, gate_w):
    def _A_ref(x, k_cache, v_cache, wq, wo):
        B, Sq, D = x.shape
        H, Dh = 32, 128
        q = (lambda x, *d: x.permute(*d))((x @ wq).reshape(B, Sq, H, Dh), 0, 2, 1, 3)
        scores = torch.einsum("bhqd,bhkd->bhqk", q, k_cache) * (Dh ** -0.5)
        p = _softmax(scores, axis=-1)
        o = torch.einsum("bhqk,bhkd->bhqd", p, v_cache)
        return (lambda x, *d: x.permute(*d))(o, 0, 2, 1, 3).reshape(B, Sq, H * Dh) @ wo

    def _B_ref(x, w1, w3, w2):
        gate = torch.einsum("bsd,df->bsf", x, w1)
        up = torch.einsum("bsd,df->bsf", x, w3)
        h = _silu(gate) * up
        out = torch.einsum("bsf,fd->bsd", h, w2)
        return out

    x = A_x
    g = _sigmoid((x * gate_w).sum(-1, keepdims=True))
    a = _A_ref(x, A_k_cache, A_v_cache, A_wq, A_wo)
    b = _B_ref(x, B_w1, B_w3, B_w2)
    return g * a + (1 - g) * b
```

```python
import sys, math, struct

NAME = "gated_mix__mha_block_cached__glu_gated_swiglu__decode"

class Cfg:
    kv_pol = "nt"
    w_pol = ""
    interleave = True
    rot = 0
    prio_ffn = 0

def f2u(x):
    return struct.unpack("<I", struct.pack("<f", x))[0]

def gen(cfg):
    L = []
    def e(s=""):
        L.append("    " + s if s and not s.endswith(":") else s)
    def c(s):
        L.append("    ; " + s)

    vLANE=0; vOFF=1; vM=2; vL=3; vPLO=4; vPHI=5; vT0=6; vT1=7
    vO=8
    vQ=16
    vS=20
    vT=28
    vK=32
    vV=96
    vA=160
    vLA=160
    vC=161
    vG=162
    NVGPR=168

    sK=32; sV=36; sWQ=40; sWO=44; sX=48; sW1=52; sW3=56; sW2=60; sGW=64; sOUT=68; sDBG=72; sWS=76
    sW=80; sH=81; sB=82; sS=83; sOFF=84; sIT=88; sT=89; sC=90; sT2=91; sM1=92; sM0=94; sT3=96; sT4=97; sT5=98

    QP=0; QF=4096; OP=6144; ML=10240; ZB=10304; GT=12352; YP=12416; LDS_BYTES=12416+16384

    kvp = (" " + cfg.kv_pol) if cfg.kv_pol else ""
    wp = (" " + cfg.w_pol) if cfg.w_pol else ""

    def srd(d, p, nbytes):
        e(f"s_mov_b32 s{d}, s{p}")
        e(f"s_mov_b32 s{d+1}, s{p+1}")
        e(f"s_mov_b32 s{d+2}, {nbytes:#x}")
        e(f"s_mov_b32 s{d+3}, 0x00020000")
    def R(b, n): return f"v[{b}:{b+n-1}]"
    def S4(b): return f"s[{b}:{b+3}]"
    DPPF = "row_mask:0xf bank_mask:0xf"

    def blk_load(base, j, srdreg, pol):
        e(f"buffer_load_dwordx4 {R(base+4*j,4)}, v{vOFF}, {S4(srdreg)}, s{sOFF+(j>>2)} offen offset:{(j&3)*1024}{pol}")

    def pv_step(acc, buf, j, plo=vPLO, phi=vPHI, bc=None):
        bc = j if bc is None else bc
        for i in range(4):
            e(f"v_dot2c_f32_bf16_dpp v{acc+2*i}, v{plo}, v{buf+4*j+i} row_newbcast:{bc} {DPPF}")
            e(f"v_dot2c_f32_bf16_dpp v{acc+2*i+1}, v{phi}, v{buf+4*j+i} row_newbcast:{bc} {DPPF}")

    def rowsum_transpose(o):
        e("s_nop 2")
        for i in range(4):
            e(f"v_permlane32_swap_b32 v{o+i}, v{o+4+i}")
        for i in range(4):
            e(f"v_add_f32 v{o+i}, v{o+i}, v{o+4+i}")
        e("s_nop 1")
        e(f"v_permlane16_swap_b32 v{o}, v{o+2}")
        e(f"v_permlane16_swap_b32 v{o+1}, v{o+3}")
        e(f"v_add_f32 v{o}, v{o}, v{o+2}")
        e(f"v_add_f32 v{o+1}, v{o+1}, v{o+3}")

    def allrows(op, r, t):
        e(f"v_mov_b32 v{t}, v{r}")
        e("s_nop 1")
        e(f"v_permlane32_swap_b32 v{r}, v{t}")
        e(f"{op} v{r}, v{r}, v{t}")
        e(f"v_mov_b32 v{t}, v{r}")
        e("s_nop 1")
        e(f"v_permlane16_swap_b32 v{r}, v{t}")
        e(f"{op} v{r}, v{r}, v{t}")

    def inrow(op, r, pre_nop=True):
        for pat in ("row_mirror", "row_half_mirror", "quad_perm:[3,2,1,0]", "quad_perm:[1,0,3,2]"):
            e("s_nop 1")
            e(f"{op}_dpp v{r}, v{r}, v{r} {pat} {DPPF}")

    def k_phase(next_srd, next_pol):
        def tgt(j): return vS+j if j < 8 else vT+(j&1)
        for j in range(16):
            e("s_waitcnt vmcnt(31)")
            t = tgt(j)
            e(f"v_dot2_f32_bf16 v{t}, v{vK+4*j}, v{vQ}, 0")
            for i in range(1,4):
                e(f"v_dot2_f32_bf16 v{t}, v{vK+4*j+i}, v{vQ+i}, v{t}")
            blk_load(vK, j, next_srd, next_pol)
            p = j-1
            if 0 <= p < 8:
                e(f"v_add_f32_dpp v{vS+p}, v{vS+p}, v{vS+p} row_mirror row_mask:0xf bank_mask:0x3")
            elif p >= 8:
                e(f"v_add_f32_dpp v{vS+p-8}, v{tgt(p)}, v{tgt(p)} row_mirror row_mask:0xf bank_mask:0xc")
        for i in range(3):
            e(f"v_add_f32_dpp v{vS+i}, v{vS+i}, v{vS+i} row_half_mirror row_mask:0xf bank_mask:0x5")
        e(f"v_add_f32_dpp v{vS+7}, v{tgt(15)}, v{tgt(15)} row_mirror row_mask:0xf bank_mask:0xc")
        e(f"v_add_f32_dpp v{vS+3}, v{vS+3}, v{vS+3} row_half_mirror row_mask:0xf bank_mask:0x5")
        for i in range(4):
            e(f"v_add_f32_dpp v{vS+i}, v{vS+4+i}, v{vS+4+i} row_half_mirror row_mask:0xf bank_mask:0xa")
        e(f"v_add_f32_dpp v{vS+0}, v{vS+0}, v{vS+0} quad_perm:[3,2,1,0] {DPPF}")
        e(f"v_add_f32_dpp v{vS+1}, v{vS+1}, v{vS+1} quad_perm:[3,2,1,0] {DPPF}")
        e(f"v_add_f32_dpp v{vS+2}, v{vS+2}, v{vS+2} quad_perm:[3,2,1,0] {DPPF}")
        e(f"v_add_f32_dpp v{vS+3}, v{vS+3}, v{vS+3} quad_perm:[3,2,1,0] {DPPF}")
        e(f"v_cndmask_b32 v{vS+0}, v{vS+0}, v{vS+2}, s[{sM1}:{sM1+1}]")
        e(f"v_cndmask_b32 v{vS+1}, v{vS+1}, v{vS+3}, s[{sM1}:{sM1+1}]")
        e("s_nop 0")
        e(f"v_add_f32_dpp v{vS+0}, v{vS+0}, v{vS+0} quad_perm:[1,0,3,2] {DPPF}")
        e(f"v_add_f32_dpp v{vS+1}, v{vS+1}, v{vS+1} quad_perm:[1,0,3,2] {DPPF}")
        e(f"v_cndmask_b32 v{vS+0}, v{vS+0}, v{vS+1}, s[{sM0}:{sM0+1}]")
        e(f"v_mul_f32 v{vS+0}, s{sC}, v{vS+0}")
        e("s_nop 1")
        e(f"v_max_f32_dpp v{vS+1}, v{vS+0}, v{vS+0} row_mirror {DPPF}")
        for pat in ("row_half_mirror", "quad_perm:[3,2,1,0]", "quad_perm:[1,0,3,2]"):
            e("s_nop 1")
            e(f"v_max_f32_dpp v{vS+1}, v{vS+1}, v{vS+1} {pat} {DPPF}")
        e(f"v_max_f32 v{vS+1}, v{vS+1}, v{vM}")
        e(f"v_sub_f32 v{vS+2}, v{vM}, v{vS+1}")
        e(f"v_sub_f32 v{vS+0}, v{vS+0}, v{vS+1}")
        e(f"v_exp_f32 v{vS+2}, v{vS+2}")
        e(f"v_exp_f32 v{vS+0}, v{vS+0}")
        e(f"v_mov_b32 v{vM}, v{vS+1}")
        e(f"v_cvt_pk_bf16_f32 v{vPLO}, v{vS+0}, 0")
        e(f"v_cvt_pk_bf16_f32 v{vPHI}, 0, v{vS+0}")
        for i in range(8):
            e(f"v_mul_f32 v{vO+i}, v{vO+i}, v{vS+2}")
        e(f"v_fma_f32 v{vL}, v{vL}, v{vS+2}, v{vPHI}")

    def v_phase(load_next):
        for j in range(16):
            e(f"s_waitcnt vmcnt({31 if load_next else 31-j})")
            pv_step(vO, vV, j)
            if load_next:
                blk_load(vV, j, sV, kvp)

    hdr = open("cdna_kernels/%s.s.ref" % NAME).read().split("\n")
    for line in hdr:
        if line.startswith("; @launch"):
            L.append(f"; @launch grid=(256,1,1) block=(576,1,1) lds={LDS_BYTES}")
            break
        L.append(line)
    L.append('.amdgcn_target "amdgcn-amd-amdhsa--gfx950"')
    L.append(".text")
    L.append(f".globl {NAME}_kernel")
    L.append(".p2align 8")
    L.append(f".type {NAME}_kernel,@function")
    L.append(f"{NAME}_kernel:")

    e("s_cmp_ge_u32 s2, 256")
    e("s_cbranch_scc1 L_end")
    e("s_load_dwordx16 s[4:19], s[0:1], 0")
    e("s_load_dwordx8 s[20:27], s[0:1], 64")
    e("s_load_dwordx2 s[28:29], s[0:1], 96")
    e(f"v_lshrrev_b32 v{vOFF}, 6, v0")
    e(f"v_and_b32 v{vLANE}, 63, v0")
    e(f"v_readfirstlane_b32 s{sW}, v{vOFF}")
    e("s_and_b32 s3, s2, 7")
    e("s_lshl_b32 s3, s3, 2")
    e(f"s_bfe_u32 s{sH}, s2, 0x20003")
    e(f"s_add_u32 s{sH}, s{sH}, s3")
    e(f"s_lshr_b32 s{sB}, s2, 6")
    e(f"s_bfe_u32 s{sS}, s2, 0x10005")
    e(f"v_lshlrev_b32 v{vOFF}, 4, v{vLANE}")
    e(f"v_and_b32 v{vC}, 15, v{vLANE}")
    e(f"v_lshrrev_b32 v{vG}, 4, v{vLANE}")
    e(f"s_cmp_eq_u32 s{sW}, 8")
    e("s_cbranch_scc1 L_ffn")

    c("kv offset = ((b*32+h)*2+s) MiB + w*16KiB")
    e(f"s_lshl_b32 s{sT}, s{sB}, 5")
    e(f"s_add_u32 s{sT}, s{sT}, s{sH}")
    e(f"s_lshl_b32 s{sT}, s{sT}, 1")
    e(f"s_add_u32 s{sT}, s{sT}, s{sS}")
    e(f"s_lshl_b32 s{sOFF}, s{sT}, 20")
    if cfg.interleave:
        e(f"s_lshl_b32 s{sT}, s{sW}, 14")
        BSTEP = 131072
    else:
        e(f"s_lshl_b32 s{sT}, s{sW}, 17")
        BSTEP = 16384
    e(f"s_add_u32 s{sOFF}, s{sOFF}, s{sT}")
    for i in range(1,4):
        e(f"s_add_u32 s{sOFF+i}, s{sOFF}, {4096*i}")
    c("wq: voff = g*8192 + c*16 ; soff = w*524288 + h*256 (+ j*32768)")
    e(f"v_lshlrev_b32 v{vT0}, 13, v{vG}")
    e(f"v_lshl_add_u32 v{vT0}, v{vC}, 4, v{vT0}")
    e(f"s_lshl_b32 s{sT}, s{sW}, 19")
    e(f"s_lshl_b32 s{sT2}, s{sH}, 8")
    e(f"s_add_u32 s{sT}, s{sT}, s{sT2}")
    c("x: voff = (4c+g)*2 ; soff = b*1024 + w*128")
    e(f"v_lshl_add_u32 v{vT1}, v{vC}, 2, v{vG}")
    e(f"v_lshlrev_b32 v{vT1}, 1, v{vT1}")
    e(f"s_lshl_b32 s{sT2}, s{sB}, 10")
    e(f"s_lshl_b32 s{sT3}, s{sW}, 7")
    e(f"s_add_u32 s{sT2}, s{sT2}, s{sT3}")
    e("s_waitcnt lgkmcnt(0)")
    srd(sX, 4, 4096)
    srd(sWQ, 10, 4194304)
    e(f"buffer_load_ushort v{vPLO}, v{vT1}, {S4(sX)}, s{sT2} offen")
    for j in range(16):
        e(f"buffer_load_dwordx4 {R(vV+4*j,4)}, v{vT0}, {S4(sWQ)}, s{sT} offen{wp}")
        if j < 15:
            e(f"s_add_u32 s{sT}, s{sT}, 32768")
    srd(sK, 6, 0x10000000)
    for j in range(16):
        blk_load(vK, j, sK, kvp)
    srd(sV, 8, 0x10000000)
    srd(sWO, 12, 4194304)
    srd(sOUT, 24, 4096)
    srd(sDBG, 26, 256)
    srd(sWS, 28, 0x100000)
    e(f"s_mov_b32 s{sC}, {f2u(math.log2(math.e)/math.sqrt(128.0)):#x}")
    e(f"s_mov_b32 s{sM1}, 0xcccccccc")
    e(f"s_mov_b32 s{sM1+1}, 0xcccccccc")
    e(f"s_mov_b32 s{sM0}, 0xaaaaaaaa")
    e(f"s_mov_b32 s{sM0+1}, 0xaaaaaaaa")
    for i in range(8):
        e(f"v_mov_b32 v{vO+i}, 0")
    c("lds addr A = w*512 + c*32 + g*8")
    e(f"v_lshlrev_b32 v{vLA}, 5, v{vC}")
    e(f"v_lshl_add_u32 v{vLA}, v{vG}, 3, v{vLA}")
    e(f"s_lshl_b32 s{sT}, s{sW}, 9")
    e(f"v_add_u32 v{vLA}, s{sT}, v{vLA}")
    e(f"v_mov_b32 v{vM}, {f2u(-1e30):#x}")
    e(f"v_mov_b32 v{vL}, 0")
    e("s_waitcnt vmcnt(32)")
    e(f"v_lshlrev_b32 v{vPHI}, 16, v{vPLO}")
    e("s_nop 1")
    c("q projection partial (wq in V buffer), issue V(0) loads")
    v_phase(True)
    rowsum_transpose(vO)
    e(f"ds_write_b64 v{vLA}, {R(vO,2)} offset:{QP}")
    e(f"v_lshlrev_b32 v{vT0}, 3, v{vLANE}")
    e("s_waitcnt lgkmcnt(0)")
    e("s_barrier")
    for i in range(8):
        dst = vO+2*i if i < 4 else vS+2*(i-4)
        e(f"ds_read_b64 {R(dst,2)}, v{vT0} offset:{QP+512*i}")
    e(f"s_lshl_b32 s{sT}, s{sW}, 8")
    e(f"v_lshl_add_u32 v{vT0}, v{vLANE}, 2, s{sT}")
    e(f"v_lshl_add_u32 v{vT1}, v{vC}, 4, s{sT}")
    e("s_waitcnt lgkmcnt(0)")
    for i in range(4):
        e(f"v_add_f32 v{vO+2*i}, v{vO+2*i}, v{vS+2*i}")
        e(f"v_add_f32 v{vO+2*i+1}, v{vO+2*i+1}, v{vS+2*i+1}")
    e(f"v_add_f32 v{vO+0}, v{vO+0}, v{vO+2}")
    e(f"v_add_f32 v{vO+1}, v{vO+1}, v{vO+3}")
    e(f"v_add_f32 v{vO+4}, v{vO+4}, v{vO+6}")
    e(f"v_add_f32 v{vO+5}, v{vO+5}, v{vO+7}")
    e(f"v_add_f32 v{vO+0}, v{vO+0}, v{vO+4}")
    e(f"v_add_f32 v{vO+1}, v{vO+1}, v{vO+5}")
    e(f"v_cvt_pk_bf16_f32 v{vO+0}, v{vO+0}, v{vO+1}")
    e(f"ds_write_b32 v{vT0}, v{vO+0} offset:{QF}")
    e("s_waitcnt lgkmcnt(0)")
    e(f"ds_read_b128 {R(vQ,4)}, v{vT1} offset:{QF}")
    for i in range(8):
        e(f"v_mov_b32 v{vO+i}, 0")
    e(f"s_mov_b32 s{sIT}, 0")
    e("s_waitcnt lgkmcnt(0)")

    L.append("L_loop:")
    for i in range(4):
        e(f"s_add_u32 s{sOFF+i}, s{sOFF+i}, {BSTEP}")
    k_phase(sK, kvp)
    v_phase(True)
    e(f"s_add_u32 s{sIT}, s{sIT}, 1")
    e(f"s_cmp_lt_u32 s{sIT}, 7")
    e("s_cbranch_scc1 L_loop")

    c("last block: prefetch wo rows h*128+16w .. +16 into K buffer")
    e(f"s_lshl_b32 s{sOFF}, s{sH}, 17")
    e(f"s_lshl_b32 s{sT}, s{sW}, 14")
    e(f"s_add_u32 s{sOFF}, s{sOFF}, s{sT}")
    for i in range(1,4):
        e(f"s_add_u32 s{sOFF+i}, s{sOFF}, {4096*i}")
    k_phase(sWO, wp)
    v_phase(False)

    c("---- wave-level combine ----")
    e(f"v_mov_b32 v{vT0}, v{vM}")
    allrows("v_max_f32", vT0, vT1)
    e(f"v_sub_f32 v{vT1}, v{vM}, v{vT0}")
    e(f"v_exp_f32 v{vT1}, v{vT1}")
    e("s_nop 0")
    e(f"v_mul_f32 v{vL}, v{vL}, v{vT1}")
    for i in range(8):
        e(f"v_mul_f32 v{vO+i}, v{vO+i}, v{vT1}")
    inrow("v_add_f32", vL)
    allrows("v_add_f32", vL, vT1)
    rowsum_transpose(vO)
    e(f"v_mov_b32 v{vT1}, v{vL}")
    e(f"ds_write_b64 v{vLA}, {R(vO,2)} offset:{OP}")
    e(f"s_lshl_b32 s{sT}, s{sW}, 3")
    e(f"v_mov_b32 v{vT}, s{sT}")
    e(f"ds_write_b64 v{vT}, {R(vT0,2)} offset:{ML}")
    e(f"s_lshl_b32 s{sT}, s{sW}, 6")
    e(f"v_lshl_add_u32 v{vT+1}, v{vC}, 2, s{sT}")
    e(f"v_mov_b32 v{vT+2}, 0")
    e("s_waitcnt lgkmcnt(0)")
    e("s_barrier")
    c("---- workgroup-level combine of O for this wave's 16 rows ----")
    mlr = vV
    opr = vV+16
    for k in range(4):
        e(f"ds_read_b128 {R(mlr+4*k,4)}, v{vT+2} offset:{ML+16*k}")
    for i in range(8):
        e(f"ds_read_b32 v{opr+i}, v{vT+1} offset:{OP+512*i}")
    e("s_waitcnt lgkmcnt(8)")
    e(f"v_max3_f32 v{vM}, v{mlr+0}, v{mlr+2}, v{mlr+4}")
    e(f"v_max3_f32 v{vM}, v{vM}, v{mlr+6}, v{mlr+8}")
    e(f"v_max3_f32 v{vM}, v{vM}, v{mlr+10}, v{mlr+12}")
    e(f"v_max_f32 v{vM}, v{vM}, v{mlr+14}")
    for i in range(8):
        e(f"v_sub_f32 v{mlr+2*i}, v{mlr+2*i}, v{vM}")
    for i in range(8):
        e(f"v_exp_f32 v{mlr+2*i}, v{mlr+2*i}")
    e("s_waitcnt lgkmcnt(0)")
    e(f"v_mul_f32 v{vL}, v{mlr+0}, v{mlr+1}")
    e(f"v_mul_f32 v{vT0}, v{mlr+0}, v{opr+0}")
    for i in range(1,8):
        e(f"v_fmac_f32 v{vL}, v{mlr+2*i}, v{mlr+2*i+1}")
        e(f"v_fmac_f32 v{vT0}, v{mlr+2*i}, v{opr+i}")
    e(f"v_cvt_pk_bf16_f32 v{vPLO}, v{vT0}, 0")
    e(f"v_cvt_pk_bf16_f32 v{vPHI}, 0, v{vT0}")
    for i in range(8):
        e(f"v_mov_b32 v{vO+i}, 0")
    c("projection with wo rows in K buffer")
    for j in range(16):
        e(f"s_waitcnt vmcnt({15-j})")
        pv_step(vO, vK, j)
    e(f"s_lshl_b32 s{sT}, s{sW}, 11")
    e(f"v_add_u32 v{vT}, s{sT}, v{vOFF}")
    e("s_nop 1")
    e(f"ds_write_b128 v{vT}, {R(vO,4)} offset:{YP}")
    e(f"ds_write_b128 v{vT}, {R(vO+4,4)} offset:{YP+1024}")
    e("s_waitcnt lgkmcnt(0)")
    e("s_barrier")
    e(f"s_cmp_lg_u32 s{sW}, 0")
    e("s_cbranch_scc1 L_wait_ticket")
    c("---- wave 0: sum partials, publish ----")
    for i in range(8):
        e(f"ds_read_b128 {R(vK+8*i,4)}, v{vOFF} offset:{YP+2048*i}")
        e(f"ds_read_b128 {R(vK+8*i+4,4)}, v{vOFF} offset:{YP+2048*i+1024}")
        if i == 6:
            e("s_waitcnt lgkmcnt(8)")
    e(f"ds_read_b128 {R(vV,4)}, v{vOFF} offset:{ZB}")
    e(f"ds_read_b128 {R(vV+4,4)}, v{vOFF} offset:{ZB+1024}")
    e(f"ds_read_b32 v{vV+8}, v{vT+2} offset:{GT}")
    e(f"v_rcp_f32 v{vT0}, v{vL}")
    e(f"v_log_f32 v{vT1}, v{vL}")
    c("slot = b*64 + h*2 + s")
    e(f"s_lshl_b32 s{sT}, s{sB}, 6")
    e(f"s_lshl_b32 s{sT2}, s{sH}, 1")
    e(f"s_add_u32 s{sT}, s{sT}, s{sT2}")
    e(f"s_add_u32 s{sT}, s{sT}, s{sS}")
    e(f"s_lshl_b32 s{sT2}, s{sT}, 11")
    e(f"s_lshl_b32 s{sT3}, s{sT}, 2")
    e(f"s_add_u32 s{sT3}, s{sT3}, 0x80000")
    e(f"v_add_f32 v{vT1}, v{vT1}, v{vM}")
    e("s_waitcnt lgkmcnt(0)")
    for step in (4,2,1):
        for i in range(step):
            for k in range(8):
                e(f"v_add_f32 v{vK+8*i+k}, v{vK+8*i+k}, v{vK+8*(i+step)+k}")
    e(f"v_mul_f32 v{vT0}, v{vT0}, v{vV+8}")
    for k in range(8):
        e(f"v_fma_f32 v{vK+k}, v{vK+k}, v{vT0}, v{vV+k}")
    e(f"buffer_store_dwordx4 {R(vK,4)}, v{vOFF}, {S4(sWS)}, s{sT2} offen sc1")
    e(f"buffer_store_dwordx4 {R(vK+4,4)}, v{vOFF}, {S4(sWS)}, s{sT2} offen offset:1024 sc1")
    e("s_mov_b64 exec, 1")
    e(f"buffer_store_dword v{vT1}, off, {S4(sWS)}, s{sT3} sc1")
    e(f"v_mov_b32 v{vT0}, 1")
    e(f"s_lshl_b32 s{sT}, s{sB}, 6")
    e("s_waitcnt vmcnt(0)")
    e(f"buffer_atomic_add v{vT0}, off, {S4(sDBG)}, s{sT} sc0")
    e("s_waitcnt vmcnt(0)")
    e(f"ds_write_b32 v{vT+2}, v{vT0} offset:{GT+4}")
    e("s_mov_b64 exec, -1")
    e("s_waitcnt lgkmcnt(0)")
    L.append("L_wait_ticket:")
    e("s_barrier")
    e(f"ds_read_b32 v{vT0}, v{vT+2} offset:{GT+4}")
    e("s_waitcnt lgkmcnt(0)")
    e(f"v_readfirstlane_b32 s{sT}, v{vT0}")
    e(f"s_cmp_lg_u32 s{sT}, 63")
    e("s_cbranch_scc1 L_end")
    c("---- last arriver of this batch: final combine ----")
    e(f"s_lshl_b32 s{sT}, s{sB}, 8")
    e(f"s_add_u32 s{sT}, s{sT}, 0x80000")
    e(f"v_lshlrev_b32 v{vT0}, 2, v{vLANE}")
    e(f"buffer_load_dword v{vT1}, v{vT0}, {S4(sWS)}, s{sT} offen sc1")
    e(f"s_lshl_b32 s{sOFF}, s{sB}, 17")
    e(f"s_lshl_b32 s{sT}, s{sW}, 14")
    e(f"s_add_u32 s{sOFF}, s{sOFF}, s{sT}")
    for i in range(1,4):
        e(f"s_add_u32 s{sOFF+i}, s{sOFF}, {4096*i}")
    for j in range(16):
        blk_load(vK, j, sWS, " sc1")
    e(f"s_lshl_b32 s{sT}, s{sW}, 3")
    e("s_waitcnt vmcnt(16)")
    e(f"v_sub_f32_dpp v{vT0}, v{vT1}, v{vT1} quad_perm:[1,0,3,2] {DPPF}")
    e(f"v_exp_f32 v{vT0}, v{vT0}")
    e("s_nop 0")
    e(f"v_add_f32 v{vT0}, 1.0, v{vT0}")
    e(f"v_rcp_f32 v{vT0}, v{vT0}")
    e("s_nop 1")
    for i in range(8):
        e(f"v_readlane_b32 s{sT2}, v{vT0}, s{sT}")
        e(f"s_add_u32 s{sT}, s{sT}, 1")
        e(f"s_waitcnt vmcnt({14-2*i})")
        e("s_nop 0")
        for k in range(8):
            if i == 0:
                e(f"v_mul_f32 v{vO+k}, s{sT2}, v{vK+8*i+k}")
            else:
                e(f"v_fmac_f32 v{vO+k}, s{sT2}, v{vK+8*i+k}")
    e(f"ds_write_b128 v{vT}, {R(vO,4)} offset:{YP}")
    e(f"ds_write_b128 v{vT}, {R(vO+4,4)} offset:{YP+1024}")
    e("s_waitcnt lgkmcnt(0)")
    e("s_barrier")
    e(f"s_cmp_lg_u32 s{sW}, 0")
    e("s_cbranch_scc1 L_end")
    for i in range(8):
        e(f"ds_read_b128 {R(vK+8*i,4)}, v{vOFF} offset:{YP+2048*i}")
        e(f"ds_read_b128 {R(vK+8*i+4,4)}, v{vOFF} offset:{YP+2048*i+1024}")
        if i == 6:
            e("s_waitcnt lgkmcnt(8)")
    e(f"s_lshl_b32 s{sT}, s{sB}, 10")
    e("s_waitcnt lgkmcnt(0)")
    for step in (4,2,1):
        for i in range(step):
            for k in range(8):
                e(f"v_add_f32 v{vK+8*i+k}, v{vK+8*i+k}, v{vK+8*(i+step)+k}")
    for k in range(4):
        e(f"v_cvt_pk_bf16_f32 v{vO+k}, v{vK+2*k}, v{vK+2*k+1}")
    e(f"buffer_store_dwordx4 {R(vO,4)}, v{vOFF}, {S4(sOUT)}, s{sT} offen")
    e("s_endpgm")

    L.append("L_ffn:")
    fG=8
    fU=16
    fX=24
    fXL=2; fXH=3; fWOFF=4; fXOFF=5
    fZ=160
    if cfg.prio_ffn:
        e(f"s_setprio {cfg.prio_ffn}")
    c("r = lane>>3, c = lane&7 ; woff = r*229376 + c*16 ; xoff = r*128")
    e(f"v_lshrrev_b32 v{vT0}, 3, v{vLANE}")
    e(f"v_and_b32 v{vT1}, 7, v{vLANE}")
    e(f"s_mov_b32 s{sT}, 229376")
    e(f"v_mul_lo_u32 v{fWOFF}, v{vT0}, s{sT}")
    e(f"v_lshl_add_u32 v{fWOFF}, v{vT1}, 4, v{fWOFF}")
    e(f"v_lshlrev_b32 v{fXOFF}, 7, v{vT0}")
    e(f"s_mul_i32 s{sT}, s{sH}, 112")
    e(f"s_lshl_b32 s{sT2}, s{sB}, 10")
    e("s_waitcnt lgkmcnt(0)")
    srd(sX, 4, 4096)
    srd(sW1, 16, 1835008)
    srd(sW3, 18, 1835008)
    srd(sW2, 20, 1835008)
    srd(sGW, 22, 1024)
    def ffn_issue(buf, xb):
        e(f"buffer_load_dwordx4 {R(xb,4)}, v{fXOFF}, {S4(sX)}, s{sT2} offen")
        e(f"s_add_u32 s{sT2}, s{sT2}, 16")
        for u in range(8):
            off = f" offset:3584" if (u & 1) else ""
            e(f"buffer_load_dwordx4 {R(buf+4*u,4)}, v{fWOFF}, {S4(sW1)}, s{sT} offen{off}{wp}")
            e(f"buffer_load_dwordx4 {R(buf+32+4*u,4)}, v{fWOFF}, {S4(sW3)}, s{sT} offen{off}{wp}")
            if u & 1:
                e(f"s_add_u32 s{sT}, s{sT}, 7168")
    def ffn_compute(buf, xb):
        for u in range(8):
            xr = xb + (u >> 1)
            if u & 1:
                e(f"v_lshrrev_b32 v{fXL}, 16, v{xr}")
                e(f"v_and_b32 v{fXH}, 0xffff0000, v{xr}")
            else:
                e(f"v_and_b32 v{fXL}, 0xffff, v{xr}")
                e(f"v_lshlrev_b32 v{fXH}, 16, v{xr}")
            for i in range(4):
                e(f"v_dot2c_f32_bf16 v{fG+2*i}, v{fXL}, v{buf+4*u+i}")
                e(f"v_dot2c_f32_bf16 v{fG+2*i+1}, v{fXH}, v{buf+4*u+i}")
                e(f"v_dot2c_f32_bf16 v{fU+2*i}, v{fXL}, v{buf+32+4*u+i}")
                e(f"v_dot2c_f32_bf16 v{fU+2*i+1}, v{fXH}, v{buf+32+4*u+i}")
    c("gate logit loads: x[b][8l..] and gate_w[8l..] into fZ regs")
    e(f"buffer_load_dwordx4 {R(fZ,4)}, v{vOFF}, {S4(sX)}, s{sT2} offen")
    e(f"buffer_load_dwordx4 {R(fZ+4,4)}, v{vOFF}, {S4(sGW)}, 0 offen")
    ffn_issue(vK, fX)
    ffn_issue(vV, fX+4)
    for i in range(16):
        e(f"v_mov_b32 v{fG+i}, 0")
    e("s_barrier")
    e("s_waitcnt vmcnt(34)")
    e(f"v_dot2_f32_bf16 v{vT0}, v{fZ}, v{fZ+4}, 0")
    for i in range(1,4):
        e(f"v_dot2_f32_bf16 v{vT0}, v{fZ+i}, v{fZ+4+i}, v{vT0}")
    e("s_nop 1")
    inrow("v_add_f32", vT0)
    allrows("v_add_f32", vT0, vT1)
    e(f"v_mul_f32 v{vT0}, {f2u(-math.log2(math.e)):#x}, v{vT0}")
    e(f"v_exp_f32 v{vT0}, v{vT0}")
    e("s_nop 0")
    e(f"v_add_f32 v{vT0}, 1.0, v{vT0}")
    e(f"v_rcp_f32 v{vT0}, v{vT0}")
    e(f"v_mov_b32 v{vT1}, 0")
    e(f"ds_write_b32 v{vT1}, v{vT0} offset:{GT}")
    e(f"v_sub_f32 v{vT0}, 1.0, v{vT0}")
    e(f"s_mov_b32 s{sIT}, 0")
    L.append("L_ffn_loop:")
    e("s_waitcnt vmcnt(17)")
    ffn_compute(vK, fX)
    ffn_issue(vK, fX)
    e("s_waitcnt vmcnt(17)")
    ffn_compute(vV, fX+4)
    ffn_issue(vV, fX+4)
    e(f"s_add_u32 s{sIT}, s{sIT}, 1")
    e(f"s_cmp_lt_u32 s{sIT}, 3")
    e("s_cbranch_scc1 L_ffn_loop")
    c("w2 rows: 56 KiB contiguous at h*57344")
    e(f"s_mul_i32 s{sOFF}, s{sH}, 57344")
    for i in range(1,4):
        e(f"s_add_u32 s{sOFF+i}, s{sOFF}, {4096*i}")
    def w2_adv():
        for i in range(4):
            e(f"s_add_u32 s{sOFF+i}, s{sOFF+i}, 16384")
    e("s_waitcnt vmcnt(17)")
    ffn_compute(vK, fX)
    for j in range(16):
        blk_load(vK, j, sW2, wp)
    w2_adv()
    e("s_waitcnt vmcnt(16)")
    ffn_compute(vV, fX+4)
    for j in range(16):
        blk_load(vV, j, sW2, wp)
    w2_adv()
    c("all-reduce gate/up over r (lanes xor 8, 16, 32)")
    e("s_nop 2")
    for i in range(16):
        e(f"v_add_f32_dpp v{fG+i}, v{fG+i}, v{fG+i} row_ror:8 {DPPF}")
    for i in range(16):
        allrows("v_add_f32", fG+i, vT1)
    c("h = silu(gate)*up ; Hlo in fG, Hhi in fU")
    for i in range(8):
        e(f"v_mul_f32 v{fX+i}, {f2u(-math.log2(math.e)):#x}, v{fG+i}")
    for i in range(8):
        e(f"v_exp_f32 v{fX+i}, v{fX+i}")
    e("s_nop 0")
    for i in range(8):
        e(f"v_add_f32 v{fX+i}, 1.0, v{fX+i}")
    for i in range(8):
        e(f"v_rcp_f32 v{fX+i}, v{fX+i}")
    e("s_nop 0")
    for i in range(8):
        e(f"v_mul_f32 v{fX+i}, v{fX+i}, v{fG+i}")
    for i in range(8):
        e(f"v_mul_f32 v{fX+i}, v{fX+i}, v{fU+i}")
    for i in range(8):
        e(f"v_cvt_pk_bf16_f32 v{fG+i}, v{fX+i}, 0")
        e(f"v_cvt_pk_bf16_f32 v{fU+i}, 0, v{fX+i}")
    for i in range(8):
        e(f"v_mov_b32 v{fZ+i}, 0")
    for j in range(16):
        e("s_waitcnt vmcnt(31)")
        f = j
        pv_step(fZ, vK, j, fG+(f&7), fU+(f&7), f>>3)
        blk_load(vK, j, sW2, wp)
    w2_adv()
    for j in range(16):
        e(f"s_waitcnt vmcnt({31 if j <= 8 else 31-(j-8)})")
        f = 16+j
        pv_step(fZ, vV, j, fG+(f&7), fU+(f&7), f>>3)
        if j < 8:
            blk_load(vV, j, sW2, wp)
    for j in range(16):
        e(f"s_waitcnt vmcnt({23-j})")
        f = 32+j
        pv_step(fZ, vK, j, fG+(f&7), fU+(f&7), f>>3)
    for j in range(8):
        e(f"s_waitcnt vmcnt({7-j})")
        f = 48+j
        pv_step(fZ, vV, j, fG+(f&7), fU+(f&7), f>>3)
    e("s_nop 2")
    for i in range(8):
        e(f"v_mul_f32 v{fZ+i}, v{fZ+i}, v{vT0}")
    e(f"ds_write_b128 v{vOFF}, {R(fZ,4)} offset:{ZB}")
    e(f"ds_write_b128 v{vOFF}, {R(fZ+4,4)} offset:{ZB+1024}")
    e("s_waitcnt lgkmcnt(0)")
    L.append("L_end:")
    e("s_endpgm")

    L.append('.section .rodata,"a"')
    L.append(".p2align 6")
    L.append(f".amdhsa_kernel {NAME}_kernel")
    L.append(f"  .amdhsa_next_free_vgpr {NVGPR}")
    L.append("  .amdhsa_next_free_sgpr 102")
    L.append(f"  .amdhsa_accum_offset {NVGPR}")
    L.append("  .amdhsa_group_segment_fixed_size 0")
    L.append("  .amdhsa_kernarg_size 104")
    L.append("  .amdhsa_user_sgpr_count 2")
    L.append("  .amdhsa_user_sgpr_kernarg_segment_ptr 1")
    L.append("  .amdhsa_system_sgpr_workgroup_id_x 1")
    L.append(".end_amdhsa_kernel")
    return "\n".join(L) + "\n"

if __name__ == "__main__":
    cfg = Cfg()
    out = "cdna_kernels/%s.s" % NAME
    for a in sys.argv[1:]:
        k, v = a.split("=", 1)
        if k == "out":
            out = v
        else:
            cur = getattr(cfg, k)
            if isinstance(cur, bool): v = v in ("1", "true", "True")
            elif isinstance(cur, int): v = int(v)
            setattr(cfg, k, v)
    open(out, "w").write(gen(cfg))
    print("wrote", out)
```

```python
import sys, math, struct

NAME = "gated_mix__mha_block_cached__glu_gated_swiglu__decode"

class Cfg:
    kv_pol = "nt"
    k_pol = "nt"
    v_pol = "nt"
    w_pol = ""
    interleave = True
    rot = 0
    prio_ffn = 0
    stamps = False
    noffn = 0
    noq = 0
    nowo = 0
    De = "88888888"
    Do = "88888888"
    pairx = 3
    NE = 72
    K00 = 0
    prio_q = 0
    D = 8
    QL = 24
    nocomp = 0
    nohs = 0
    DQ = 8
    K0 = 16

def f2u(x):
    return struct.unpack("<I", struct.pack("<f", x))[0]

def gen(cfg):
    L = []
    def e(s=""):
        L.append("    " + s if s and not s.endswith(":") else s)
    def c(s):
        L.append("    ; " + s)

    vLANE=0; vOFF=1; vM=2; vL=3; vPLO=4; vPHI=5; vT0=6; vT1=7
    vO=8
    vQ=16
    vS=20
    vT=28
    vK=32
    vV=96
    vA=160
    vLA=160
    vC=161
    vG=162
    vZ=163; vONE=164; vNX=165
    NVGPR=168

    sK=32; sV=36; sWQ=40; sWO=44; sX=48; sW1=52; sW3=56; sW2=60; sGW=64; sOUT=68; sDBG=72; sWS=76
    sW=80; sH=81; sB=82; sS=83; sOFF=84; sIT=88; sT=89; sC=90; sT2=91; sM1=92; sM0=94; sT3=96; sT4=97; sT5=98; sOFN=98; sBASE=97; sN=3

    QP=0; QF=4096; OP=6144; ML=10240; ZB=10304; GT=12352; CNT=12360; YP=12416; LDS_BYTES=12416+16384

    kvp = (" " + cfg.kv_pol) if cfg.kv_pol else ""
    wp = (" " + cfg.w_pol) if cfg.w_pol else ""

    def srd(d, p, nbytes):
        e(f"s_mov_b32 s{d}, s{p}")
        e(f"s_mov_b32 s{d+1}, s{p+1}")
        e(f"s_mov_b32 s{d+2}, {nbytes:#x}")
        e(f"s_mov_b32 s{d+3}, 0x00020000")
    def R(b, n): return f"v[{b}:{b+n-1}]"
    def S4(b): return f"s[{b}:{b+3}]"
    DPPF = "row_mask:0xf bank_mask:0xf"

    def blk_load(base, j, srdreg, pol):
        e(f"buffer_load_dwordx4 {R(base+4*j,4)}, v{vOFF}, {S4(srdreg)}, s{sOFF+(j>>2)} offen offset:{(j&3)*1024}{pol}")

    def pv_step(acc, buf, j, plo=vPLO, phi=vPHI, bc=None):
        bc = j if bc is None else bc
        for i in range(1 if cfg.nocomp else 4):
            e(f"v_dot2c_f32_bf16_dpp v{acc+2*i}, v{plo}, v{buf+4*j+i} row_newbcast:{bc} {DPPF}")
            e(f"v_dot2c_f32_bf16_dpp v{acc+2*i+1}, v{phi}, v{buf+4*j+i} row_newbcast:{bc} {DPPF}")

    def rowsum_transpose(o):
        e("s_nop 2")
        for i in range(4):
            e(f"v_permlane32_swap_b32 v{o+i}, v{o+4+i}")
        for i in range(4):
            e(f"v_add_f32 v{o+i}, v{o+i}, v{o+4+i}")
        e("s_nop 1")
        e(f"v_permlane16_swap_b32 v{o}, v{o+2}")
        e(f"v_permlane16_swap_b32 v{o+1}, v{o+3}")
        e(f"v_add_f32 v{o}, v{o}, v{o+2}")
        e(f"v_add_f32 v{o+1}, v{o+1}, v{o+3}")

    def allrows(op, r, t):
        e(f"v_mov_b32 v{t}, v{r}")
        e("s_nop 1")
        e(f"v_permlane32_swap_b32 v{r}, v{t}")
        e(f"{op} v{r}, v{r}, v{t}")
        e(f"v_mov_b32 v{t}, v{r}")
        e("s_nop 1")
        e(f"v_permlane16_swap_b32 v{r}, v{t}")
        e(f"{op} v{r}, v{r}, v{t}")

    def inrow(op, r, pre_nop=True):
        for pat in ("row_mirror", "row_half_mirror", "quad_perm:[3,2,1,0]", "quad_perm:[1,0,3,2]"):
            e("s_nop 1")
            e(f"{op}_dpp v{r}, v{r}, v{r} {pat} {DPPF}")

    def stamp(k):
        if not cfg.stamps: return
        r = 30 if k == 0 else 4+2*(k-1)
        e(f"s_memrealtime s[{r}:{r+1}]")
        e("s_waitcnt lgkmcnt(0)")
    def stamp_exit():
        if not cfg.stamps:
            e("s_endpgm"); return
        e("s_branch L_stamp_exit")

    trk = []
    def t_issue(tag): trk.append(tag)
    def t_wait(tag):
        if tag not in trk: return
        i = trk.index(tag)
        n = len(trk) - 1 - i
        assert n < 64
        e(f"s_waitcnt vmcnt({n})")
        del trk[:i+1]
    def issue_pos(cur, pos, nblk):
        blk, r = divmod(pos, 32)
        if blk >= nblk or ("p", pos) in issued: return
        issued.add(("p", pos))
        base = sOFF if blk == cur else sOFN
        assert blk in (cur, cur+1)
        j = r & 15
        buf, srdreg = (vK, sK) if r < 16 else (vV, sV)
        pol = cfg.k_pol if r < 16 else cfg.v_pol
        pol = (" " + pol) if pol else ""
        e(f"buffer_load_dwordx4 {R(buf+4*j,4)}, v{vOFF}, {S4(srdreg)}, s{base+(j>>2)} offen offset:{(j&3)*1024}{pol}")
        t_issue(("p", pos))
    issued = set()
    cur = {'D': 8}

    def k_phase(blk, nblk, wo=False):
        def tgt(j): return vS+j if j < 8 else vT+(j&1)
        for j in range(16):
            t_wait(("p", blk*32+j))
            t = tgt(j)
            e(f"v_dot2_f32_bf16 v{t}, v{vK+4*j}, v{vQ}, 0")
            for i in range(1,1 if cfg.nocomp else 4):
                e(f"v_dot2_f32_bf16 v{t}, v{vK+4*j+i}, v{vQ+i}, v{t}")
            if cfg.nocomp: e("s_nop 2")
            issue_pos(blk, blk*32+j+cur['D'], nblk)
            if wo and not cfg.nowo:
                e(f"buffer_load_dwordx4 {R(vK+4*j,4)}, v{vOFF}, {S4(sWO)}, s{sOFN+(j>>2)} offen offset:{(j&3)*1024}{wp}")
                t_issue(("wo", j))
            p = j-1
            if 0 <= p < 8:
                e(f"v_add_f32_dpp v{vS+p}, v{vS+p}, v{vS+p} row_mirror row_mask:0xf bank_mask:0x3")
            elif p >= 8:
                e(f"v_add_f32_dpp v{vS+p-8}, v{tgt(p)}, v{tgt(p)} row_mirror row_mask:0xf bank_mask:0xc")
        for i in range(3):
            e(f"v_add_f32_dpp v{vS+i}, v{vS+i}, v{vS+i} row_half_mirror row_mask:0xf bank_mask:0x5")
        e(f"v_add_f32_dpp v{vS+7}, v{tgt(15)}, v{tgt(15)} row_mirror row_mask:0xf bank_mask:0xc")
        e(f"v_add_f32_dpp v{vS+3}, v{vS+3}, v{vS+3} row_half_mirror row_mask:0xf bank_mask:0x5")
        for i in range(4):
            e(f"v_add_f32_dpp v{vS+i}, v{vS+4+i}, v{vS+4+i} row_half_mirror row_mask:0xf bank_mask:0xa")
        e(f"v_add_f32_dpp v{vS+0}, v{vS+0}, v{vS+0} quad_perm:[3,2,1,0] {DPPF}")
        e(f"v_add_f32_dpp v{vS+1}, v{vS+1}, v{vS+1} quad_perm:[3,2,1,0] {DPPF}")
        e(f"v_add_f32_dpp v{vS+2}, v{vS+2}, v{vS+2} quad_perm:[3,2,1,0] {DPPF}")
        e(f"v_add_f32_dpp v{vS+3}, v{vS+3}, v{vS+3} quad_perm:[3,2,1,0] {DPPF}")
        e(f"v_cndmask_b32 v{vS+0}, v{vS+0}, v{vS+2}, s[{sM1}:{sM1+1}]")
        e(f"v_cndmask_b32 v{vS+1}, v{vS+1}, v{vS+3}, s[{sM1}:{sM1+1}]")
        e("s_nop 0")
        e(f"v_add_f32_dpp v{vS+0}, v{vS+0}, v{vS+0} quad_perm:[1,0,3,2] {DPPF}")
        e(f"v_add_f32_dpp v{vS+1}, v{vS+1}, v{vS+1} quad_perm:[1,0,3,2] {DPPF}")
        e(f"v_cndmask_b32 v{vS+0}, v{vS+0}, v{vS+1}, s[{sM0}:{sM0+1}]")
        e(f"v_mul_f32 v{vS+0}, s{sC}, v{vS+0}")
        e("s_nop 1")
        e(f"v_max_f32_dpp v{vS+1}, v{vS+0}, v{vS+0} row_mirror {DPPF}")
        for pat in ("row_half_mirror", "quad_perm:[3,2,1,0]", "quad_perm:[1,0,3,2]"):
            e("s_nop 1")
            e(f"v_max_f32_dpp v{vS+1}, v{vS+1}, v{vS+1} {pat} {DPPF}")
        e(f"v_max_f32 v{vS+1}, v{vS+1}, v{vM}")
        e(f"v_sub_f32 v{vS+2}, v{vM}, v{vS+1}")
        e(f"v_sub_f32 v{vS+0}, v{vS+0}, v{vS+1}")
        e(f"v_exp_f32 v{vS+2}, v{vS+2}")
        e(f"v_exp_f32 v{vS+0}, v{vS+0}")
        e(f"v_mov_b32 v{vM}, v{vS+1}")
        e(f"v_cvt_pk_bf16_f32 v{vPLO}, v{vS+0}, 0")
        e(f"v_cvt_pk_bf16_f32 v{vPHI}, 0, v{vS+0}")
        for i in range(8):
            e(f"v_mul_f32 v{vO+i}, v{vO+i}, v{vS+2}")
        e(f"v_fma_f32 v{vL}, v{vL}, v{vS+2}, v{vPHI}")

    def v_phase(blk, nblk):
        for j in range(16):
            t_wait(("p", blk*32+16+j))
            pv_step(vO, vV, j)
            issue_pos(blk, blk*32+16+j+cur['D'], nblk)

    hdr = open("cdna_kernels/%s.s.ref" % NAME).read().split("\n")
    for line in hdr:
        if line.startswith("; @launch"):
            L.append(f"; @launch grid=(256,1,1) block=(576,1,1) lds={LDS_BYTES}")
            break
        L.append(line)
    L.append('.amdgcn_target "amdgcn-amd-amdhsa--gfx950"')
    L.append(".text")
    L.append(f".globl {NAME}_kernel")
    L.append(".p2align 8")
    L.append(f".type {NAME}_kernel,@function")
    L.append(f"{NAME}_kernel:")

    e("s_cmp_ge_u32 s2, 256")
    e("s_cbranch_scc1 L_end")
    if cfg.stamps: e("s_memrealtime s[30:31]")
    e("s_load_dwordx16 s[4:19], s[0:1], 0")
    e("s_load_dwordx8 s[20:27], s[0:1], 64")
    e("s_load_dwordx2 s[28:29], s[0:1], 96")
    e(f"v_lshrrev_b32 v{vOFF}, 6, v0")
    e(f"v_and_b32 v{vLANE}, 63, v0")
    e(f"v_readfirstlane_b32 s{sW}, v{vOFF}")
    if cfg.pairx == 3:
        c("pairs (id, id^3): xp = ((id>>2)&1)*2 + (((id>>1)^id)&1) ; h = xp*8 + ((id>>3)&7) ; b = id>>6 ; s = id&1")
        e("s_lshr_b32 s3, s2, 1")
        e("s_xor_b32 s3, s3, s2")
        e("s_and_b32 s3, s3, 1")
        e(f"s_bfe_u32 s{sH}, s2, 0x10002")
        e(f"s_lshl_b32 s{sH}, s{sH}, 1")
        e(f"s_add_u32 s3, s3, s{sH}")
        e("s_lshl_b32 s3, s3, 3")
        e(f"s_bfe_u32 s{sH}, s2, 0x30003")
        e(f"s_add_u32 s{sH}, s{sH}, s3")
        e(f"s_lshr_b32 s{sB}, s2, 6")
        e(f"s_and_b32 s{sS}, s2, 1")
    else:
        c("h = (id&7)*4 + ((id>>3)&3) ; b = id>>6 ; s = (id>>5)&1")
        e("s_and_b32 s3, s2, 7")
        e("s_lshl_b32 s3, s3, 2")
        e(f"s_bfe_u32 s{sH}, s2, 0x20003")
        e(f"s_add_u32 s{sH}, s{sH}, s3")
        e(f"s_lshr_b32 s{sB}, s2, 6")
        e(f"s_bfe_u32 s{sS}, s2, 0x10005")
    c("unit = b*32+h ; pair counter offset in ws = 0x90000 + unit*256")
    e(f"s_lshl_b32 s{sT}, s{sB}, 5")
    e(f"s_add_u32 s{sT}, s{sT}, s{sH}")
    e(f"s_lshl_b32 s{sBASE}, s{sT}, 21")
    e(f"s_lshl_b32 s{sN}, s{sT}, 8")
    e(f"s_add_u32 s{sN}, s{sN}, 0x90000")
    e(f"v_lshlrev_b32 v{vOFF}, 4, v{vLANE}")
    e(f"v_and_b32 v{vC}, 15, v{vLANE}")
    e(f"v_lshrrev_b32 v{vG}, 4, v{vLANE}")
    e(f"s_cmp_eq_u32 s{sW}, 8")
    e("s_cbranch_scc1 L_ffn")

    if cfg.prio_q: e(f"s_setprio {cfg.prio_q}")
    c("first block = s*8 + w")
    e(f"s_lshl_b32 s{sT}, s{sS}, 3")
    e(f"s_add_u32 s{sT}, s{sT}, s{sW}")
    e(f"s_lshl_b32 s{sT}, s{sT}, 14")
    e(f"s_add_u32 s{sOFF}, s{sBASE}, s{sT}")
    for i in range(1,4):
        e(f"s_add_u32 s{sOFF+i}, s{sOFF}, {4096*i}")
    c("wq: voff = g*8192 + c*16 ; soff = w*524288 + h*256 (+ j*32768)")
    e(f"v_lshlrev_b32 v{vT0}, 13, v{vG}")
    e(f"v_lshl_add_u32 v{vT0}, v{vC}, 4, v{vT0}")
    e(f"s_lshl_b32 s{sT}, s{sW}, 19")
    e(f"s_lshl_b32 s{sT2}, s{sH}, 8")
    e(f"s_add_u32 s{sT}, s{sT}, s{sT2}")
    c("x: voff = (4c+g)*2 ; soff = b*1024 + w*128")
    e(f"v_lshl_add_u32 v{vT1}, v{vC}, 2, v{vG}")
    e(f"v_lshlrev_b32 v{vT1}, 1, v{vT1}")
    e(f"s_lshl_b32 s{sT2}, s{sB}, 10")
    e(f"s_lshl_b32 s{sT3}, s{sW}, 7")
    e(f"s_add_u32 s{sT2}, s{sT2}, s{sT3}")
    e("s_waitcnt lgkmcnt(0)")
    srd(sK, 6, 0x10000000)
    for j in range(cfg.K00):
        issue_pos(0, j, 8)
    srd(sX, 4, 4096)
    srd(sWQ, 10, 4194304)
    e(f"buffer_load_ushort v{vPLO}, v{vT1}, {S4(sX)}, s{sT2} offen")
    t_issue("x")
    for j in range(16):
        if cfg.noq: continue
        e(f"buffer_load_dwordx4 {R(vV+4*j,4)}, v{vT0}, {S4(sWQ)}, s{sT} offen{wp}")
        t_issue(("wq", j))
        if j < 15:
            e(f"s_add_u32 s{sT}, s{sT}, 32768")
    if cfg.prio_q: e("s_setprio 0")
    for j in range(cfg.K0):
        issue_pos(0, j, 8)
    srd(sV, 8, 0x10000000)
    srd(sWO, 12, 4194304)
    srd(sOUT, 24, 4096)
    srd(sDBG, 26, 256)
    srd(sWS, 28, 0x200000 if cfg.stamps else 0x100000)
    if cfg.stamps:
        for k in range(1,8):
            e(f"s_mov_b64 s[{4+2*(k-1)}:{5+2*(k-1)}], s[30:31]")
    e(f"s_mov_b32 s{sC}, {f2u(math.log2(math.e)/math.sqrt(128.0)):#x}")
    e(f"s_mov_b32 s{sM1}, 0xcccccccc")
    e(f"s_mov_b32 s{sM1+1}, 0xcccccccc")
    e(f"s_mov_b32 s{sM0}, 0xaaaaaaaa")
    e(f"s_mov_b32 s{sM0+1}, 0xaaaaaaaa")
    for i in range(8):
        e(f"v_mov_b32 v{vO+i}, 0")
    c("lds addr A = w*512 + c*32 + g*8")
    e(f"v_lshlrev_b32 v{vLA}, 5, v{vC}")
    e(f"v_lshl_add_u32 v{vLA}, v{vG}, 3, v{vLA}")
    e(f"s_lshl_b32 s{sT}, s{sW}, 9")
    e(f"v_add_u32 v{vLA}, s{sT}, v{vLA}")
    e(f"v_mov_b32 v{vM}, {f2u(-1e30):#x}")
    e(f"v_mov_b32 v{vL}, 0")
    t_wait("x")
    e(f"v_lshlrev_b32 v{vPHI}, 16, v{vPLO}")
    e("s_nop 1")
    c("q projection partial (wq in V buffer), issue some V(0) loads")
    nq = cfg.K0
    for j in range(16):
        if not cfg.noq: t_wait(("wq", j))
        pv_step(vO, vV, j)
        if nq < cfg.QL and (nq < 16 or nq - 16 <= j):
            issue_pos(0, nq, 8); nq += 1
    rowsum_transpose(vO)
    e(f"ds_write_b64 v{vLA}, {R(vO,2)} offset:{QP}")
    e(f"v_lshlrev_b32 v{vT0}, 3, v{vLANE}")
    e("s_waitcnt lgkmcnt(0)")
    e("s_barrier")
    for i in range(8):
        dst = vO+2*i if i < 4 else vS+2*(i-4)
        e(f"ds_read_b64 {R(dst,2)}, v{vT0} offset:{QP+512*i}")
    e(f"s_lshl_b32 s{sT}, s{sW}, 8")
    e(f"v_lshl_add_u32 v{vT0}, v{vLANE}, 2, s{sT}")
    e(f"v_lshl_add_u32 v{vT1}, v{vC}, 4, s{sT}")
    e("s_waitcnt lgkmcnt(0)")
    for i in range(4):
        e(f"v_add_f32 v{vO+2*i}, v{vO+2*i}, v{vS+2*i}")
        e(f"v_add_f32 v{vO+2*i+1}, v{vO+2*i+1}, v{vS+2*i+1}")
    e(f"v_add_f32 v{vO+0}, v{vO+0}, v{vO+2}")
    e(f"v_add_f32 v{vO+1}, v{vO+1}, v{vO+3}")
    e(f"v_add_f32 v{vO+4}, v{vO+4}, v{vO+6}")
    e(f"v_add_f32 v{vO+5}, v{vO+5}, v{vO+7}")
    e(f"v_add_f32 v{vO+0}, v{vO+0}, v{vO+4}")
    e(f"v_add_f32 v{vO+1}, v{vO+1}, v{vO+5}")
    e(f"v_cvt_pk_bf16_f32 v{vO+0}, v{vO+0}, v{vO+1}")
    e(f"ds_write_b32 v{vT0}, v{vO+0} offset:{QF}")
    e("s_waitcnt lgkmcnt(0)")
    e(f"ds_read_b128 {R(vQ,4)}, v{vT1} offset:{QF}")
    for i in range(8):
        e(f"v_mov_b32 v{vO+i}, 0")
    e(f"s_mov_b32 s{sIT}, 0")
    e("s_waitcnt lgkmcnt(0)")

    stamp(1)
    def grab():
        e(f"v_mov_b32 v{vNX}, 1")
        e("s_mov_b64 exec, 1")
        e(f"buffer_atomic_add v{vNX}, off, {S4(sWS)}, s{sN} sc0")
        e("s_mov_b64 exec, -1")
        t_issue("tk")
    def check(lbl):
        t_wait("tk")
        e(f"v_readfirstlane_b32 s{sT}, v{vNX}")
        e(f"s_cmp_ge_u32 s{sT}, 128")
        e(f"s_cbranch_scc1 {lbl}")
        e(f"s_lshl_b32 s{sT}, s{sT}, 14")
        e(f"s_add_u32 s{sOFN}, s{sBASE}, s{sT}")
        for i in range(1,4):
            e(f"s_add_u32 s{sOFN+i}, s{sOFN}, {4096*i}")
    grab()
    Ds = sorted(set(int(ch,36) for ch in cfg.De+cfg.Do))
    assert max(Ds) <= 16
    if len(Ds) > 1:
        def enc(sx): return sum(Ds.index(int(ch,36)) << (4*i) for i,ch in enumerate(sx))
        e(f"s_mov_b32 s{sT}, {enc(cfg.De):#x}")
        e(f"s_mov_b32 s{sT2}, {enc(cfg.Do):#x}")
        e("s_bitcmp1_b32 s2, 0")
        e(f"s_cselect_b32 s{sT}, s{sT2}, s{sT}")
        e(f"s_lshl_b32 s{sT2}, s{sW}, 2")
        e(f"s_lshr_b32 s{sT}, s{sT}, s{sT2}")
        e(f"s_and_b32 s{sT}, s{sT}, 15")
        for i, D in enumerate(Ds[1:], 1):
            e(f"s_cmp_eq_u32 s{sT}, {i}")
            e(f"s_cbranch_scc1 L_var{D}")
    st0 = (list(trk), set(issued))
    def restore(st):
        trk[:] = st[0]; issued.clear(); issued.update(st[1])
    for D in Ds:
        cur['D'] = D
        restore(st0)
        L.append(f"L_var{D}:")
        for p in range(D): issue_pos(0, p, 8)
        k_phase(0, 8)
        check(f"L_last0_{D}")
        stA = (list(trk), set(issued))
        v_phase(0, 8)
        assert trk == [("p", 32+j) for j in range(D)], trk
        L.append(f"L_loop{D}:")
        for i in range(4):
            e(f"s_mov_b32 s{sOFF+i}, s{sOFN+i}")
        grab()
        k_phase(1, 8)
        check(f"L_last1_{D}")
        stB = (list(trk), set(issued))
        v_phase(1, 8)
        assert trk == [("p", 64+j) for j in range(D)], trk
        e(f"s_branch L_loop{D}")
        L.append(f"L_last0_{D}:")
        restore(stA)
        for j in range(16): issue_pos(0, 16+j, 1)
        assert trk == [("p", 16+j) for j in range(16)][16-len(trk):], trk
        e("s_branch L_lastc")
        L.append(f"L_last1_{D}:")
        restore(stB)
        for j in range(16): issue_pos(1, 48+j, 2)
        assert trk == [("p", 48+j) for j in range(16)][16-len(trk):], trk
        e("s_branch L_lastc")
    L.append("L_lastc:")
    trk[:] = [("p", 48+j) for j in range(16)]
    stamp(2)
    c("last block: V phase + wo rows h*128+16w .. +16 into K buffer")
    e(f"s_lshl_b32 s{sOFN}, s{sH}, 17")
    e(f"s_lshl_b32 s{sT}, s{sW}, 14")
    e(f"s_add_u32 s{sOFN}, s{sOFN}, s{sT}")
    for i in range(1,4):
        e(f"s_add_u32 s{sOFN+i}, s{sOFN}, {4096*i}")
    for j in range(16):
        issue_pos(1, 48+j, 2)
    def wo_ld(j):
        if cfg.nowo: return
        e(f"buffer_load_dwordx4 {R(vK+4*j,4)}, v{vOFF}, {S4(sWO)}, s{sOFN+(j>>2)} offen offset:{(j&3)*1024}{wp}")
        t_issue(("wo", j))
    for j in range(16):
        wo_ld(j)
    v_phase(1, 2)

    stamp(3)
    c("---- wave-level combine ----")
    e(f"v_mov_b32 v{vT0}, v{vM}")
    allrows("v_max_f32", vT0, vT1)
    e(f"v_sub_f32 v{vT1}, v{vM}, v{vT0}")
    e(f"v_exp_f32 v{vT1}, v{vT1}")
    e("s_nop 0")
    e(f"v_mul_f32 v{vL}, v{vL}, v{vT1}")
    for i in range(8):
        e(f"v_mul_f32 v{vO+i}, v{vO+i}, v{vT1}")
    inrow("v_add_f32", vL)
    allrows("v_add_f32", vL, vT1)
    rowsum_transpose(vO)
    e(f"v_mov_b32 v{vT1}, v{vL}")
    e(f"ds_write_b64 v{vLA}, {R(vO,2)} offset:{OP}")
    e(f"s_lshl_b32 s{sT}, s{sW}, 3")
    e(f"v_mov_b32 v{vT}, s{sT}")
    e(f"ds_write_b64 v{vT}, {R(vT0,2)} offset:{ML}")
    e(f"s_lshl_b32 s{sT}, s{sW}, 6")
    e(f"v_lshl_add_u32 v{vT+1}, v{vC}, 2, s{sT}")
    e(f"v_mov_b32 v{vT+2}, 0")
    e("s_waitcnt lgkmcnt(0)")
    e("s_barrier")
    c("---- workgroup-level combine of O for this wave's 16 rows ----")
    mlr = vV
    opr = vV+16
    for k in range(4):
        e(f"ds_read_b128 {R(mlr+4*k,4)}, v{vT+2} offset:{ML+16*k}")
    for i in range(8):
        e(f"ds_read_b32 v{opr+i}, v{vT+1} offset:{OP+512*i}")
    e("s_waitcnt lgkmcnt(8)")
    e(f"v_max3_f32 v{vM}, v{mlr+0}, v{mlr+2}, v{mlr+4}")
    e(f"v_max3_f32 v{vM}, v{vM}, v{mlr+6}, v{mlr+8}")
    e(f"v_max3_f32 v{vM}, v{vM}, v{mlr+10}, v{mlr+12}")
    e(f"v_max_f32 v{vM}, v{vM}, v{mlr+14}")
    for i in range(8):
        e(f"v_sub_f32 v{mlr+2*i}, v{mlr+2*i}, v{vM}")
    for i in range(8):
        e(f"v_exp_f32 v{mlr+2*i}, v{mlr+2*i}")
    e("s_waitcnt lgkmcnt(0)")
    e(f"v_mul_f32 v{vL}, v{mlr+0}, v{mlr+1}")
    e(f"v_mul_f32 v{vT0}, v{mlr+0}, v{opr+0}")
    for i in range(1,8):
        e(f"v_fmac_f32 v{vL}, v{mlr+2*i}, v{mlr+2*i+1}")
        e(f"v_fmac_f32 v{vT0}, v{mlr+2*i}, v{opr+i}")
    e(f"v_cvt_pk_bf16_f32 v{vPLO}, v{vT0}, 0")
    e(f"v_cvt_pk_bf16_f32 v{vPHI}, 0, v{vT0}")
    for i in range(8):
        e(f"v_mov_b32 v{vO+i}, 0")
    c("projection with wo rows in K buffer")
    for j in range(16):
        if ("wo", j) in trk: t_wait(("wo", j))
        pv_step(vO, vK, j)
    assert not trk
    e(f"s_lshl_b32 s{sT}, s{sW}, 11")
    e(f"v_add_u32 v{vT}, s{sT}, v{vOFF}")
    e("s_nop 1")
    e(f"ds_write_b128 v{vT}, {R(vO,4)} offset:{YP}")
    e(f"ds_write_b128 v{vT}, {R(vO+4,4)} offset:{YP+1024}")
    e("s_waitcnt lgkmcnt(0)")
    e("s_barrier")
    stamp(4)
    e(f"s_cmp_lg_u32 s{sW}, 0")
    e("s_cbranch_scc1 L_wait_ticket")
    c("---- wave 0: sum partials, publish ----")
    for i in range(8):
        e(f"ds_read_b128 {R(vK+8*i,4)}, v{vOFF} offset:{YP+2048*i}")
        e(f"ds_read_b128 {R(vK+8*i+4,4)}, v{vOFF} offset:{YP+2048*i+1024}")
        if i == 6:
            e("s_waitcnt lgkmcnt(8)")
    e(f"ds_read_b32 v{vV+8}, v{vT+2} offset:{GT}")
    e(f"v_rcp_f32 v{vT0}, v{vL}")
    e(f"v_log_f32 v{vT1}, v{vL}")
    c("slot = b*64 + h*2 + s")
    e(f"s_lshl_b32 s{sT}, s{sB}, 6")
    e(f"s_lshl_b32 s{sT2}, s{sH}, 1")
    e(f"s_add_u32 s{sT}, s{sT}, s{sT2}")
    e(f"s_add_u32 s{sT}, s{sT}, s{sS}")
    e(f"s_lshl_b32 s{sT2}, s{sT}, 11")
    e(f"s_lshl_b32 s{sT3}, s{sT}, 2")
    e(f"s_add_u32 s{sT3}, s{sT3}, 0x80000")
    e(f"v_add_f32 v{vT1}, v{vT1}, v{vM}")
    e("s_waitcnt lgkmcnt(0)")
    for step in (4,2,1):
        for i in range(step):
            for k in range(8):
                e(f"v_add_f32 v{vK+8*i+k}, v{vK+8*i+k}, v{vK+8*(i+step)+k}")
    e(f"v_mul_f32 v{vT0}, v{vT0}, v{vV+8}")
    for k in range(8):
        e(f"v_mul_f32 v{vK+k}, v{vK+k}, v{vT0}")
    e(f"buffer_store_dwordx4 {R(vK,4)}, v{vOFF}, {S4(sWS)}, s{sT2} offen sc1")
    e(f"buffer_store_dwordx4 {R(vK+4,4)}, v{vOFF}, {S4(sWS)}, s{sT2} offen offset:1024 sc1")
    e("s_mov_b64 exec, 1")
    e(f"buffer_store_dword v{vT1}, off, {S4(sWS)}, s{sT3} sc1")
    e(f"v_mov_b32 v{vT0}, 1")
    e(f"s_lshl_b32 s{sT}, s{sB}, 6")
    e("s_waitcnt vmcnt(0)")
    e(f"buffer_atomic_add v{vT0}, off, {S4(sDBG)}, s{sT} sc0")
    e("s_waitcnt vmcnt(0)")
    e(f"ds_write_b32 v{vT+2}, v{vT0} offset:{GT+4}")
    e("s_mov_b64 exec, -1")
    e("s_waitcnt lgkmcnt(0)")
    L.append("L_wait_ticket:")
    e("s_barrier")
    e(f"ds_read_b32 v{vT0}, v{vT+2} offset:{GT+4}")
    e("s_waitcnt lgkmcnt(0)")
    e(f"v_readfirstlane_b32 s{sT}, v{vT0}")
    stamp(5)
    e(f"s_cmp_lg_u32 s{sT}, 63")
    e("s_cbranch_scc1 L_exit")
    c("---- last arriver of this batch: final combine ----")
    e(f"s_lshl_b32 s{sT}, s{sB}, 8")
    e(f"s_add_u32 s{sT}, s{sT}, 0x80000")
    e(f"v_lshlrev_b32 v{vT0}, 2, v{vLANE}")
    e(f"buffer_load_dword v{vT1}, v{vT0}, {S4(sWS)}, s{sT} offen sc1")
    e(f"s_lshl_b32 s{sOFF}, s{sB}, 17")
    e(f"s_lshl_b32 s{sT}, s{sW}, 14")
    e(f"s_add_u32 s{sOFF}, s{sOFF}, s{sT}")
    for i in range(1,4):
        e(f"s_add_u32 s{sOFF+i}, s{sOFF}, {4096*i}")
    for j in range(16):
        blk_load(vK, j, sWS, " sc1")
    e(f"s_lshl_b32 s{sT}, s{sB}, 11")
    e(f"s_add_u32 s{sT}, s{sT}, 0xE0000")
    e(f"buffer_load_dwordx4 {R(vV,4)}, v{vOFF}, {S4(sWS)}, s{sT} offen sc1")
    e(f"buffer_load_dwordx4 {R(vV+4,4)}, v{vOFF}, {S4(sWS)}, s{sT} offen offset:1024 sc1")
    e(f"s_lshl_b32 s{sT}, s{sW}, 3")
    e("s_waitcnt vmcnt(18)")
    e(f"v_sub_f32_dpp v{vT0}, v{vT1}, v{vT1} quad_perm:[1,0,3,2] {DPPF}")
    e(f"v_exp_f32 v{vT0}, v{vT0}")
    e("s_nop 0")
    e(f"v_add_f32 v{vT0}, 1.0, v{vT0}")
    e(f"v_rcp_f32 v{vT0}, v{vT0}")
    e("s_nop 1")
    for i in range(8):
        e(f"v_readlane_b32 s{sT2}, v{vT0}, s{sT}")
        e(f"s_add_u32 s{sT}, s{sT}, 1")
        e(f"s_waitcnt vmcnt({16-2*i})")
        e("s_nop 0")
        for k in range(8):
            if i == 0:
                e(f"v_mul_f32 v{vO+k}, s{sT2}, v{vK+8*i+k}")
            else:
                e(f"v_fmac_f32 v{vO+k}, s{sT2}, v{vK+8*i+k}")
    e(f"ds_write_b128 v{vT}, {R(vO,4)} offset:{YP}")
    e(f"ds_write_b128 v{vT}, {R(vO+4,4)} offset:{YP+1024}")
    e("s_waitcnt lgkmcnt(0)")
    e("s_barrier")
    e(f"s_cmp_lg_u32 s{sW}, 0")
    e("s_cbranch_scc1 L_exit")
    for i in range(8):
        e(f"ds_read_b128 {R(vK+8*i,4)}, v{vOFF} offset:{YP+2048*i}")
        e(f"ds_read_b128 {R(vK+8*i+4,4)}, v{vOFF} offset:{YP+2048*i+1024}")
        if i == 6:
            e("s_waitcnt lgkmcnt(8)")
    e(f"s_lshl_b32 s{sT}, s{sB}, 10")
    e("s_waitcnt vmcnt(0) lgkmcnt(0)")
    for step in (4,2,1):
        for i in range(step):
            for k in range(8):
                e(f"v_add_f32 v{vK+8*i+k}, v{vK+8*i+k}, v{vK+8*(i+step)+k}")
    for k in range(8):
        e(f"v_add_f32 v{vK+k}, v{vK+k}, v{vV+k}")
    for k in range(4):
        e(f"v_cvt_pk_bf16_f32 v{vO+k}, v{vK+2*k}, v{vK+2*k+1}")
    e(f"buffer_store_dwordx4 {R(vO,4)}, v{vOFF}, {S4(sOUT)}, s{sT} offen")
    if cfg.stamps:
        e("s_waitcnt vmcnt(0)")
        stamp(6)
    L.append("L_exit:")
    stamp_exit()

    L.append("L_ffn:")
    fG=8
    fU=16
    fX=24
    fXL=2; fXH=3; fWOFF=4; fXOFF=5
    fZ=160
    e("s_setprio 3")
    c("r = lane>>3, c = lane&7 ; woff = r*229376 + c*16 ; xoff = r*128")
    e(f"v_lshrrev_b32 v{vT0}, 3, v{vLANE}")
    e(f"v_and_b32 v{vT1}, 7, v{vLANE}")
    e(f"s_mov_b32 s{sT}, 229376")
    e(f"v_mul_lo_u32 v{fWOFF}, v{vT0}, s{sT}")
    e(f"v_lshl_add_u32 v{fWOFF}, v{vT1}, 4, v{fWOFF}")
    e(f"v_lshlrev_b32 v{fXOFF}, 7, v{vT0}")
    e(f"s_lshl_b32 s{sT}, s{sH}, 7")
    e(f"s_lshl_b32 s{sT2}, s{sB}, 10")
    e("s_waitcnt lgkmcnt(0)")
    srd(sX, 4, 4096)
    srd(sW1, 16, 1835008)
    srd(sW3, 18, 1835008)
    srd(sW2, 20, 1835008)
    srd(sGW, 22, 1024)
    srd(sDBG, 26, 256)
    srd(sWS, 28, 0x200000 if cfg.stamps else 0x100000)
    c("pair counter init handshake: flags at dbg[b*64 + 4 + (h>>4)*4], bits 2*(h&15): bit0 claimed, bit1 ready")
    e(f"s_lshl_b32 s{sT3}, s{sB}, 6")
    e(f"s_lshr_b32 s{sIT}, s{sH}, 4")
    e(f"s_lshl_b32 s{sIT}, s{sIT}, 2")
    e(f"s_add_u32 s{sT3}, s{sT3}, s{sIT}")
    e(f"s_add_u32 s{sT3}, s{sT3}, 4")
    e(f"s_and_b32 s{sIT}, s{sH}, 15")
    e(f"s_lshl_b32 s{sIT}, s{sIT}, 1")
    e(f"s_lshl_b32 s{sC}, 1, s{sIT}")
    if cfg.nohs: e("s_branch L_hs_done")
    e("s_mov_b64 exec, 1")
    e(f"v_mov_b32 v{fXL}, s{sC}")
    e(f"buffer_atomic_or v{fXL}, off, {S4(sDBG)}, s{sT3} sc0")
    e("s_waitcnt vmcnt(0)")
    e(f"v_readfirstlane_b32 s{sM0}, v{fXL}")
    e(f"s_lshr_b32 s{sM0}, s{sM0}, s{sIT}")
    e(f"s_bitcmp1_b32 s{sM0}, 0")
    e("s_cbranch_scc1 L_hs_poll")
    e(f"v_mov_b32 v{fXL}, 16")
    e(f"buffer_atomic_swap v{fXL}, off, {S4(sWS)}, s{sN} sc0")
    e(f"s_lshl_b32 s{sC}, s{sC}, 1")
    e("s_waitcnt vmcnt(0)")
    e(f"v_mov_b32 v{fXL}, s{sC}")
    e(f"buffer_atomic_or v{fXL}, off, {S4(sDBG)}, s{sT3}")
    e("s_branch L_hs_done")
    L.append("L_hs_poll:")
    e(f"s_bitcmp1_b32 s{sM0}, 1")
    e("s_cbranch_scc1 L_hs_done")
    e(f"v_mov_b32 v{fXL}, s{sC}")
    e(f"buffer_atomic_or v{fXL}, off, {S4(sDBG)}, s{sT3} sc0")
    e("s_waitcnt vmcnt(0)")
    e(f"v_readfirstlane_b32 s{sM0}, v{fXL}")
    e(f"s_lshr_b32 s{sM0}, s{sM0}, s{sIT}")
    e("s_branch L_hs_poll")
    L.append("L_hs_done:")
    e("s_mov_b64 exec, -1")
    e("s_waitcnt vmcnt(0)")
    if cfg.prio_ffn != 3: e(f"s_setprio {cfg.prio_ffn}")
    if cfg.stamps:
        for k in range(1,8):
            e(f"s_mov_b64 s[{4+2*(k-1)}:{5+2*(k-1)}], s[30:31]")
    def ffn_issue(buf, xb):
        e(f"buffer_load_dwordx4 {R(xb,4)}, v{fXOFF}, {S4(sX)}, s{sT2} offen")
        e(f"s_add_u32 s{sT2}, s{sT2}, 16")
        for u in range(8):
            off = f" offset:3584" if (u & 1) else ""
            e(f"buffer_load_dwordx4 {R(buf+4*u,4)}, v{fWOFF}, {S4(sW1)}, s{sT} offen{off}{wp}")
            e(f"buffer_load_dwordx4 {R(buf+32+4*u,4)}, v{fWOFF}, {S4(sW3)}, s{sT} offen{off}{wp}")
            if u & 1:
                e(f"s_add_u32 s{sT}, s{sT}, 7168")
    def ffn_compute(buf, xb):
        for u in range(8):
            xr = xb + (u >> 1)
            if u & 1:
                e(f"v_lshrrev_b32 v{fXL}, 16, v{xr}")
                e(f"v_and_b32 v{fXH}, 0xffff0000, v{xr}")
            else:
                e(f"v_and_b32 v{fXL}, 0xffff, v{xr}")
                e(f"v_lshlrev_b32 v{fXH}, 16, v{xr}")
            for i in range(4):
                e(f"v_dot2c_f32_bf16 v{fG+2*i}, v{fXL}, v{buf+4*u+i}")
                e(f"v_dot2c_f32_bf16 v{fG+2*i+1}, v{fXH}, v{buf+4*u+i}")
                e(f"v_dot2c_f32_bf16 v{fU+2*i}, v{fXL}, v{buf+32+4*u+i}")
                e(f"v_dot2c_f32_bf16 v{fU+2*i+1}, v{fXH}, v{buf+32+4*u+i}")
    c("gate logit loads: x[b][8l..] and gate_w[8l..] into fZ regs")
    e(f"buffer_load_dwordx4 {R(fZ,4)}, v{vOFF}, {S4(sX)}, s{sT2} offen")
    e(f"buffer_load_dwordx4 {R(fZ+4,4)}, v{vOFF}, {S4(sGW)}, 0 offen")
    e("s_barrier")
    e("s_waitcnt vmcnt(0)")
    e(f"v_dot2_f32_bf16 v{vT0}, v{fZ}, v{fZ+4}, 0")
    for i in range(1,4):
        e(f"v_dot2_f32_bf16 v{vT0}, v{fZ+i}, v{fZ+4+i}, v{vT0}")
    e("s_nop 1")
    inrow("v_add_f32", vT0)
    allrows("v_add_f32", vT0, vT1)
    e(f"v_mul_f32 v{vT0}, {f2u(-math.log2(math.e)):#x}, v{vT0}")
    e(f"v_exp_f32 v{vT0}, v{vT0}")
    e("s_nop 0")
    e(f"v_add_f32 v{vT0}, 1.0, v{vT0}")
    e(f"v_rcp_f32 v{vT0}, v{vT0}")
    e(f"v_mov_b32 v{vT1}, 0")
    e(f"ds_write_b32 v{vT1}, v{vT0} offset:{GT}")
    e(f"v_sub_f32 v{vT0}, 1.0, v{vT0}")
    c("FFN job only for s==0 and h<28")
    e(f"s_lshl_b32 s{sIT}, s{sS}, 5")
    e(f"s_add_u32 s{sIT}, s{sIT}, s{sH}")
    e(f"s_cmp_ge_u32 s{sIT}, 28")
    e("s_cbranch_scc1 L_ffn_fin")
    if cfg.noffn: e("s_branch L_ffn_fin")
    ffn_issue(vK, fX)
    ffn_issue(vV, fX+4)
    for i in range(16):
        e(f"v_mov_b32 v{fG+i}, 0")
    e(f"s_mov_b32 s{sIT}, 0")
    L.append("L_ffn_loop:")
    e("s_waitcnt vmcnt(17)")
    ffn_compute(vK, fX)
    ffn_issue(vK, fX)
    e("s_waitcnt vmcnt(17)")
    ffn_compute(vV, fX+4)
    ffn_issue(vV, fX+4)
    e(f"s_add_u32 s{sIT}, s{sIT}, 1")
    e(f"s_cmp_lt_u32 s{sIT}, 3")
    e("s_cbranch_scc1 L_ffn_loop")
    c("w2 rows: 64 KiB contiguous at h*65536")
    e(f"s_lshl_b32 s{sOFF}, s{sH}, 16")
    for i in range(1,4):
        e(f"s_add_u32 s{sOFF+i}, s{sOFF}, {4096*i}")
    def w2_adv():
        for i in range(4):
            e(f"s_add_u32 s{sOFF+i}, s{sOFF+i}, 16384")
    e("s_waitcnt vmcnt(17)")
    ffn_compute(vK, fX)
    for j in range(16):
        blk_load(vK, j, sW2, wp)
    w2_adv()
    e("s_waitcnt vmcnt(16)")
    ffn_compute(vV, fX+4)
    for j in range(16):
        blk_load(vV, j, sW2, wp)
    w2_adv()
    c("all-reduce gate/up over r (lanes xor 8, 16, 32)")
    e("s_nop 2")
    for i in range(16):
        e(f"v_add_f32_dpp v{fG+i}, v{fG+i}, v{fG+i} row_ror:8 {DPPF}")
    for i in range(16):
        allrows("v_add_f32", fG+i, vT1)
    c("h = silu(gate)*up ; Hlo in fG, Hhi in fU")
    for i in range(8):
        e(f"v_mul_f32 v{fX+i}, {f2u(-math.log2(math.e)):#x}, v{fG+i}")
    for i in range(8):
        e(f"v_exp_f32 v{fX+i}, v{fX+i}")
    e("s_nop 0")
    for i in range(8):
        e(f"v_add_f32 v{fX+i}, 1.0, v{fX+i}")
    for i in range(8):
        e(f"v_rcp_f32 v{fX+i}, v{fX+i}")
    e("s_nop 0")
    for i in range(8):
        e(f"v_mul_f32 v{fX+i}, v{fX+i}, v{fG+i}")
    for i in range(8):
        e(f"v_mul_f32 v{fX+i}, v{fX+i}, v{fU+i}")
    for i in range(8):
        e(f"v_cvt_pk_bf16_f32 v{fG+i}, v{fX+i}, 0")
        e(f"v_cvt_pk_bf16_f32 v{fU+i}, 0, v{fX+i}")
    for i in range(8):
        e(f"v_mov_b32 v{fZ+i}, 0")
    for j in range(16):
        e("s_waitcnt vmcnt(31)")
        f = j
        pv_step(fZ, vK, j, fG+(f&7), fU+(f&7), f>>3)
        blk_load(vK, j, sW2, wp)
    w2_adv()
    for j in range(16):
        e("s_waitcnt vmcnt(31)")
        f = 16+j
        pv_step(fZ, vV, j, fG+(f&7), fU+(f&7), f>>3)
        blk_load(vV, j, sW2, wp)
    for j in range(16):
        e(f"s_waitcnt vmcnt({31-j})")
        f = 32+j
        pv_step(fZ, vK, j, fG+(f&7), fU+(f&7), f>>3)
    for j in range(16):
        e(f"s_waitcnt vmcnt({15-j})")
        f = 48+j
        pv_step(fZ, vV, j, fG+(f&7), fU+(f&7), f>>3)
    c("publish (1-g)*z partial at ws 0xA0000 + (b*32+h)*2048 ; ticket dbg[b*64+12]")
    e(f"s_lshl_b32 s{sT}, s{sB}, 5")
    e(f"s_add_u32 s{sT}, s{sT}, s{sH}")
    e(f"s_lshl_b32 s{sT}, s{sT}, 11")
    e(f"s_add_u32 s{sT}, s{sT}, 0xA0000")
    for i in range(8):
        e(f"v_mul_f32 v{fZ+i}, v{fZ+i}, v{vT0}")
    e(f"buffer_store_dwordx4 {R(fZ,4)}, v{vOFF}, {S4(sWS)}, s{sT} offen sc1")
    e(f"buffer_store_dwordx4 {R(fZ+4,4)}, v{vOFF}, {S4(sWS)}, s{sT} offen offset:1024 sc1")
    e(f"s_lshl_b32 s{sT}, s{sB}, 6")
    e(f"v_mov_b32 v{vT1}, 1")
    e("s_mov_b64 exec, 1")
    e("s_waitcnt vmcnt(0)")
    e(f"buffer_atomic_add v{vT1}, off, {S4(sDBG)}, s{sT} offset:12 sc0")
    e("s_mov_b64 exec, -1")
    e("s_waitcnt vmcnt(0)")
    e(f"v_readfirstlane_b32 s{sT}, v{vT1}")
    e(f"s_cmp_lg_u32 s{sT}, 27")
    e("s_cbranch_scc1 L_ffn_fin")
    c("last FFN finisher of this batch: sum the 28 partials (56 KiB) -> zsum at ws 0xE0000 + b*2048")
    e(f"s_lshl_b32 s{sOFF}, s{sB}, 16")
    e(f"s_add_u32 s{sOFF}, s{sOFF}, 0xA0000")
    for i in range(1,4):
        e(f"s_add_u32 s{sOFF+i}, s{sOFF}, {4096*i}")
    for j in range(16):
        blk_load(vK, j, sWS, " sc1")
    w2_adv()
    for j in range(16):
        blk_load(vV, j, sWS, " sc1")
    w2_adv()
    for i in range(8):
        e(f"v_mov_b32 v{fZ+i}, 0")
    def zacc(buf, j):
        for k in range(4):
            e(f"v_add_f32 v{fZ+4*(j&1)+k}, v{fZ+4*(j&1)+k}, v{buf+4*j+k}")
    for j in range(16):
        e("s_waitcnt vmcnt(31)")
        zacc(vK, j)
        blk_load(vK, j, sWS, " sc1")
    w2_adv()
    for j in range(16):
        e(f"s_waitcnt vmcnt({31 if j <= 8 else 31-(j-8)})")
        zacc(vV, j)
        if j < 8:
            blk_load(vV, j, sWS, " sc1")
    for j in range(16):
        e(f"s_waitcnt vmcnt({23-j})")
        zacc(vK, j)
    for j in range(8):
        e(f"s_waitcnt vmcnt({7-j})")
        zacc(vV, j)
    e(f"s_lshl_b32 s{sT}, s{sB}, 11")
    e(f"s_add_u32 s{sT}, s{sT}, 0xE0000")
    e(f"buffer_store_dwordx4 {R(fZ,4)}, v{vOFF}, {S4(sWS)}, s{sT} offen sc1")
    e(f"buffer_store_dwordx4 {R(fZ+4,4)}, v{vOFF}, {S4(sWS)}, s{sT} offen offset:1024 sc1")
    L.append("L_ffn_fin:")
    e("s_waitcnt vmcnt(0) lgkmcnt(0)")
    if cfg.stamps:
        stamp(1)
        L.append("L_stamp_exit:")
        e("s_mov_b64 exec, 1")
        e(f"s_lshl_b32 s{sT}, s2, 4")
        e(f"s_add_u32 s{sT}, s{sT}, s{sW}")
        e(f"s_lshl_b32 s{sT}, s{sT}, 6")
        e(f"s_add_u32 s{sT}, s{sT}, 0x100000")
        for k in range(8):
            r = 30 if k == 0 else 4+2*(k-1)
            e(f"v_mov_b32 v2, s{r}")
            e(f"v_mov_b32 v3, s{r+1}")
            e(f"buffer_store_dwordx2 v[2:3], off, {S4(sWS)}, s{sT} offset:{8*k}")
            e("s_waitcnt vmcnt(0)")
    L.append("L_end:")
    e("s_endpgm")

    L.append('.section .rodata,"a"')
    L.append(".p2align 6")
    L.append(f".amdhsa_kernel {NAME}_kernel")
    L.append(f"  .amdhsa_next_free_vgpr {NVGPR}")
    L.append("  .amdhsa_next_free_sgpr 102")
    L.append(f"  .amdhsa_accum_offset {NVGPR}")
    L.append("  .amdhsa_group_segment_fixed_size 0")
    L.append("  .amdhsa_kernarg_size 104")
    L.append("  .amdhsa_user_sgpr_count 2")
    L.append("  .amdhsa_user_sgpr_kernarg_segment_ptr 1")
    L.append("  .amdhsa_system_sgpr_workgroup_id_x 1")
    L.append(".end_amdhsa_kernel")
    return "\n".join(L) + "\n"

if __name__ == "__main__":
    cfg = Cfg()
    out = "cdna_kernels/%s.s" % NAME
    for a in sys.argv[1:]:
        k, v = a.split("=", 1)
        if k == "out":
            out = v
        else:
            cur = getattr(cfg, k)
            if isinstance(cur, bool): v = v in ("1", "true", "True")
            elif isinstance(cur, int): v = int(v)
            setattr(cfg, k, v)
    open(out, "w").write(gen(cfg))
    print("wrote", out)
```
